```python
import torch

def _softmax(x, axis=-1):
    return torch.softmax(x, dim=axis)

def _gelu(x):
    return torch.nn.functional.gelu(x, approximate='tanh')

def _silu(x):
    return torch.nn.functional.silu(x)

def _sigmoid(x):
    return torch.sigmoid(x)

def _layernorm(x, axis=-1, eps=1e-05):
    m = x.mean(dim=axis, keepdim=True)
    v = x.var(dim=axis, keepdim=True, unbiased=False)
    return (x - m) / torch.sqrt(v + eps)

def _scatter_add(tgt, idx, src, axis=0):
    return tgt.clone().index_add_(axis, idx, src)

def _segment_sum(src, seg, n):
    out = torch.zeros((n,) + src.shape[1:], dtype=src.dtype)
    return out.index_add_(0, seg, src)

def _pad(x, pw):
    flat = tuple((v for pair in reversed(pw) for v in pair))
    return torch.nn.functional.pad(x, flat)
kernel_name = 'adaLN_cond__sliding_block_cached__mixer_channel_mlp__decode'

def setup_inputs():

    _w = lambda a: (lambda t: t.to(torch.bfloat16) if t.is_floating_point() else t)(torch.as_tensor(a))

    def _A_setup():
        B, Sq, D = (2, 1, 1024)
        Hq, Hkv, Sk, Dh = (32, 4, 32768, 128)
        assert Hq % Hkv == 0, (Hq, Hkv)
        return {'x': _w((lambda *s: torch.randn(*s, dtype=torch.bfloat16) * 0.05)(B, Sq, D)), 'k_cache': _w((lambda *s: torch.randn(*s, dtype=torch.bfloat16) * 3.2)(B, Hkv, Sk, Dh)), 'v_cache': _w((lambda *s: torch.randn(*s, dtype=torch.bfloat16) * 0.4)(B, Hkv, Sk, Dh)), 'wq': _w((lambda *s: torch.randn(*s, dtype=torch.bfloat16) * 3.2)(D, Hq * Dh) * D ** (-0.5)), 'wo': _w((lambda *s: torch.randn(*s, dtype=torch.bfloat16) * 0.4)(Hq * Dh, D) * (Hq * Dh) ** (-0.5))}
    _A_in = _A_setup()

    def _B_setup():
        B, S, D, F = (2, 1, 1024, 3584)
        return {'x': _w((lambda *s: torch.randn(*s, dtype=torch.bfloat16) * 0.05)(B, S, D)), 'w1': _w((lambda *s: torch.randn(*s, dtype=torch.bfloat16) * 3.2)(D, F) * D ** (-0.5)), 'b1': _w((lambda *s: torch.randn(*s, dtype=torch.bfloat16) * 3.2)(F)), 'w2': _w((lambda *s: torch.randn(*s, dtype=torch.bfloat16) * 0.2)(F, D) * F ** (-0.5)), 'b2': _w((lambda *s: torch.randn(*s, dtype=torch.bfloat16) * 0.4)(D))}
    _B_in = _B_setup()
    return {'A_x': _A_in['x'], 'A_k_cache': _A_in['k_cache'], 'A_v_cache': _A_in['v_cache'], 'A_wq': _A_in['wq'], 'A_wo': _A_in['wo'], 'B_x': _B_in['x'], 'B_w1': _B_in['w1'], 'B_b1': _B_in['b1'], 'B_w2': _B_in['w2'], 'B_b2': _B_in['b2'], 'c': _w((lambda *s: torch.randn(*s, dtype=torch.bfloat16) * 0.2)(2, 1024) * 8.0), 'w_mod': _w((lambda *s: torch.randn(*s, dtype=torch.bfloat16) * 0.2)(1024, 6 * 1024) * 1024 ** (-0.5) * 8.0)}

def reference(A_x, A_k_cache, A_v_cache, A_wq, A_wo, B_x, B_w1, B_b1, B_w2, B_b2, c, w_mod):

    def _A_ref(x, k_cache, v_cache, wq, wo):
        B, Sq, D = x.shape
        Hq, Dh = (32, 128)
        Hkv, Sk = (k_cache.shape[1], k_cache.shape[2])
        W = min(4096, max(256, Sk // 4))
        rep = Hq // Hkv
        q = (lambda x, *d: x.permute(*d))((x @ wq).reshape(B, Sq, Hq, Dh), 0, 2, 1, 3)
        k = (lambda x, n, axis: torch.repeat_interleave(x, n, dim=axis))(k_cache[:, :, Sk - W:, :], rep, axis=1)
        v = (lambda x, n, axis: torch.repeat_interleave(x, n, dim=axis))(v_cache[:, :, Sk - W:, :], rep, axis=1)
        scores = torch.einsum('bhqd,bhkd->bhqk', q, k) * Dh ** (-0.5)
        p = _softmax(scores, axis=-1)
        o = torch.einsum('bhqk,bhkd->bhqd', p, v)
        return (lambda x, *d: x.permute(*d))(o, 0, 2, 1, 3).reshape(B, Sq, Hq * Dh) @ wo

    def _B_ref(x, w1, b1, w2, b2):
        y = _layernorm(x, axis=-1)
        h = _gelu(torch.einsum('bsd,df->bsf', y, w1) + b1)
        return torch.einsum('bsf,fd->bsd', h, w2) + b2
    x = A_x
    mod = (_silu(c) @ w_mod).reshape(c.shape[0], 6, 1, -1)
    sa, ca, ga, sb, cb, gb = (mod[:, 0].clone(), mod[:, 1].clone(), mod[:, 2].clone(), mod[:, 3].clone(), mod[:, 4].clone(), mod[:, 5].clone())
    h = _layernorm(x, axis=-1) * (1 + ca) + sa
    x = x + ga * _A_ref(h, A_k_cache, A_v_cache, A_wq, A_wo)
    h = _layernorm(x, axis=-1) * (1 + cb) + sb
    x = x + gb * _B_ref(h, B_w1, B_b1, B_w2, B_b2)
    return x
```

```python
import re

TRANS = ("v_exp_f32", "v_log_f32", "v_rcp_f32", "v_rsq_f32", "v_sqrt_f32", "v_sin_f32", "v_cos_f32")

def regs_of(tok):
    tok = tok.strip()
    neg = tok.startswith("-")
    if neg: tok = tok[1:]
    if tok.startswith("abs(") or tok.startswith("|"):
        tok = tok.strip("|").replace("abs(", "").rstrip(")")
    m = re.fullmatch(r"([vsa])(\d+)", tok)
    if m: return [(m.group(1), int(m.group(2)))]
    m = re.fullmatch(r"([vsa])\[(\d+):(\d+)\]", tok)
    if m: return [(m.group(1), k) for k in range(int(m.group(2)), int(m.group(3)) + 1)]
    if tok == "vcc": return [("s", 106), ("s", 107)]
    if tok == "exec": return [("s", 126), ("s", 127)]
    if tok == "m0": return [("s", 124)]
    return []

def split_ops(s):
    out, depth, cur = [], 0, ""
    for ch in s:
        if ch == "[": depth += 1
        if ch == "]": depth -= 1
        if ch == "," and depth == 0:
            out.append(cur); cur = ""
        else:
            cur += ch
    if cur.strip(): out.append(cur)
    return [o.strip() for o in out]

class Ins:
    def __init__(self, text):
        self.text = text
        t = text.split(";")[0].strip()
        parts = t.split(None, 1)
        self.mn = parts[0]
        rest = parts[1] if len(parts) > 1 else ""
        ops = split_ops(rest)
        self.mods = ""
        if ops:
            last = ops[-1].split(None, 1)
            if len(last) > 1 and not last[0].startswith("hwreg") :
                ops[-1] = last[0]; self.mods = last[1]
        self.ops = ops
        mn = self.mn
        self.valu = mn.startswith("v_") and not mn.startswith("v_mfma")
        self.mfma = mn.startswith("v_mfma")
        self.ds = mn.startswith("ds_")
        self.vmem = mn.startswith("buffer_") or mn.startswith("global_")
        self.salu = mn.startswith("s_")
        self.trans = any(mn.startswith(x) for x in TRANS)
        self.dpp = ("quad_perm" in self.mods) or ("row_" in self.mods)
        self.permlane = mn.startswith("v_permlane")
        self.rdlane = mn.startswith("v_readlane") or mn.startswith("v_readfirstlane")
        self.wr, self.rd = [], []
        R = [regs_of(o) for o in ops]
        if self.valu:
            if self.permlane:
                self.wr = R[0] + R[1]; self.rd = R[0] + R[1]
            else:
                self.wr = list(R[0])
                k = 1
                if mn.startswith(("v_add_co", "v_sub_co", "v_addc_co", "v_subb_co", "v_mad_u64")):
                    self.wr += R[1]; k = 2
                for r in R[k:]: self.rd += r
                if mn.startswith(("v_fmac", "v_mac", "v_dot2c", "v_pk_fmac")) or self.dpp or "d16" in mn:
                    self.rd += R[0]
                if mn.startswith("v_cndmask") and len(ops) == 3: self.rd += regs_of("vcc")
        elif self.mfma:
            self.wr = R[0]; self.A = R[1]; self.B = R[2]; self.C = R[3]; self.rd = R[1] + R[2] + R[3]
        elif self.ds:
            if mn.startswith("ds_read") or "rtn" in mn or mn.startswith(("ds_bpermute", "ds_permute", "ds_swizzle")):
                self.wr = R[0]
                for r in R[1:]: self.rd += r
            else:
                for r in R: self.rd += r
        elif self.vmem:
            if "load" in mn and "lds" not in self.mods:
                self.wr = R[0]
                for r in R[1:]: self.rd += r
            else:
                for r in R: self.rd += r
            self.store = "store" in mn
            self.wide = self.store and ("x4" in mn or "x3" in mn)
            self.data = R[0] if self.store else []
        elif self.salu:
            if mn.startswith(("s_cmp", "s_branch", "s_cbranch", "s_waitcnt", "s_barrier", "s_nop", "s_sleep", "s_endpgm", "s_setprio", "s_bitcmp")):
                for r in R: self.rd += r
            else:
                self.wr = R[0] if R else []
                for r in R[1:]: self.rd += r
    def states(self):
        if self.mn == "s_nop": return int(self.ops[0], 0) + 1
        return 1

class Asm:
    def __init__(self):
        self.items = []
        self.nlabel = 0
    def t(self, text): self.items.append(("t", text))
    def label(self, name): self.items.append(("t", name + ":"))
    def newlabel(self, base="L"):
        self.nlabel += 1
        return "%s_%d" % (base, self.nlabel)
    def __call__(self, text):
        for line in text.strip().split("\n"):
            line = line.strip()
            if not line or line.startswith(";"): continue
            if line.endswith(":"): self.items.append(("t", line)); continue
            self.items.append(("i", Ins(line)))
    def need(self, hist, ins):
        req = 0
        rd = set(ins.rd); wr = set(ins.wr)
        vrd = {r for r in rd if r[0] != "s"}; vwr = {r for r in wr if r[0] != "s"}
        srd = {r for r in rd if r[0] == "s"}
        for p, d in hist:
            n = 0
            pw = set(p.wr)
            pvw = {r for r in pw if r[0] != "s"}; psw = {r for r in pw if r[0] == "s"}
            if p.valu:
                if ins.mfma and (pvw & vrd): n = max(n, 2)
                if ins.valu and ins.dpp and (pvw & vrd): n = max(n, 2)
                if ins.valu and ins.permlane and (pvw & vrd): n = max(n, 2)
                if ins.valu and ins.rdlane and (pvw & vrd): n = max(n, 1)
                if p.trans and ins.valu and not ins.trans and (pvw & vrd): n = max(n, 1)
                if p.trans and (ins.vmem or ins.ds or ins.mfma) and (pvw & vrd): n = max(n, 1)
                if psw & srd:
                    if ins.valu: n = max(n, 4 if ins.rdlane else 2)
                    if ins.vmem: n = max(n, 5)
                    if ins.salu: n = max(n, 2)
                if psw and ins.mn.startswith("s_cbranch_vcc") and (("s", 106) in psw): n = max(n, 2)
            if p.mfma:
                if ins.mfma:
                    if pvw & set(ins.A + ins.B): n = max(n, 8)
                    if pvw & set(ins.C):
                        if set(ins.C) != pvw: n = max(n, 6)
                    if (pvw & vwr) and set(ins.C) != pvw and vwr != pvw: n = max(n, 6)
                elif (ins.valu or ins.ds or ins.vmem) and (pvw & (vrd | vwr)): n = max(n, 8)
                if ins.valu and (set(p.C) & vwr): n = max(n, 3)
            if p.vmem and getattr(p, "wide", False) and (set(p.data) & vwr) and (ins.valu or ins.mfma): n = max(n, 2)
            if p.salu and psw and ("s", 124) in psw and ins.vmem and "lds" in ins.mods: n = max(n, 1)
            if p.valu and (("s",126) in psw) and (ins.valu or ins.mfma): n = max(n, 5)
            req = max(req, n - d)
        return req
    def render(self):
        out = []
        hist = []
        for kind, it in self.items:
            if kind == "t":
                out.append(it); continue
            n = self.need(hist, it)
            while n > 0:
                k = min(n, 16)
                nop = Ins("s_nop %d" % (k - 1))
                out.append("    " + nop.text)
                hist = [(p, d + k) for p, d in hist]
                n -= k
            out.append("    " + it.text)
            st = it.states()
            hist = [(p, d + st) for p, d in hist if d + st < 24]
            hist.append((it, 0))
        return "\n".join(out) + "\n"
```

```python
GEN     = 0x0
MB_MOD  = 0x1000
MB_Q    = 0xD000
MB_PS   = 0x15000
MB_P    = 0x20000
MB_O    = 0xA0000
MB_X    = 0xA8000
MB_H    = 0xB0000
MB_D    = 0xB8000
WS_USED = 0xE0000
STAMPS  = 0x100000
WS_SRD  = 0x200000
```

```python
import sys
from asmlib import Asm
import layout as L

NAME = "adaLN_cond__sliding_block_cached__mixer_channel_mlp__decode"
KN = NAME + "_kernel"
STAMPS = int(sys.argv[2]) if len(sys.argv) > 2 else 0
SPIN = 20000

TAG16, TAG8, WAVE, XCD, CI, SUB = "s4", "s5", "s6", "s7", "s8", "s9"
KIND, IDX, KIND1, IDX1, KIND2, IDX2 = "s10", "s11", "s12", "s13", "s14", "s15"
P = dict(x=16, k=18, v=20, wq=22, wo=24, bx=26, w1=28, b1=30, w2=32, b2=34, c=36, wm=38, out=40, dbg=42, ws=44)
SELLO, SELHI = "s46", "s47"
SRD_WS, SRD_W, SRD_A, SRD_B = 48, 52, 56, 60
STRIDE, TILEOFF, T0, T1, OUTOFF, INOFF, SPINC, MASKHI = "s64", "s65", "s66", "s67", "s68", "s69", "s70", "s71"
OUTB, T2, T3, T4 = "s72", "s73", "s74", "s75"
EB, EG, KVB = "s76", "s77", "s78"
def srd(n): return "s[%d:%d]" % (n, n + 3)
K_MOD, K_Q, K_O, K_U, K_FIN, K_DONE = 0, 1, 2, 3, 4, 5

ACT, ACT_B = 0, 2176
RED = 4608
ST = RED + 10240
QL, QL_H = 0, 288
MX = 2304
LS = 2560
ORED, ORED_W = 4096, 4224
DRED = 4096
LDS_BYTES = 40960

a = Asm()

def vq(n): return "v[%d:%d]" % (n, n + 3)
def v2(n): return "v[%d:%d]" % (n, n + 1)

JOBN = "s79"
def stamp(k):
    if STAMPS:
        a("s_memrealtime s[100:101]")
        a("s_waitcnt lgkmcnt(0)")
        a("s_mov_b32 s%d, s100" % (80 + k))
def stamp_job(k):
    if STAMPS:
        a("s_memrealtime s[100:101]")
        a("s_waitcnt lgkmcnt(0)")
        d = a.newlabel("L_st")
        for j in range(3):
            n = a.newlabel("L_st")
            a(f"s_cmp_lg_u32 {JOBN}, {j}")
            a(f"s_cbranch_scc1 {n}")
            a(f"s_mov_b32 s{80 + 1 + 4*j + k}, s100")
            a(f"s_branch {d}")
            a.label(n)
        a.label(d)

def mk_srd(n, base, size):
    a(f"""
    s_mov_b32 s{n}, s{base}
    s_mov_b32 s{n+1}, s{base+1}
    s_mov_b32 s{n+2}, {size}
    s_mov_b32 s{n+3}, 0x00020000
    """)

def bf16r(dst, src):
    a(f"v_cvt_pk_bf16_f32 {dst}, {src}, {src}")
    a(f"v_and_b32 {dst}, 0xffff0000, {dst}")

def bf16r2(d0, d1, s0, s1, tmp):
    a(f"v_cvt_pk_bf16_f32 {tmp}, {s0}, {s1}")
    a(f"v_lshlrev_b32 {d0}, 16, {tmp}")
    a(f"v_and_b32 {d1}, 0xffff0000, {tmp}")

def poll(loads, tag, mask, acc="v16", t0="v17", t1="v18", sleep=0):
    lp = a.newlabel("L_poll"); done = a.newlabel("L_pdone")
    a(f"s_mov_b32 {SPINC}, {SPIN}")
    a.label(lp)
    for txt, regs in loads: a(txt)
    a("s_waitcnt vmcnt(0)")
    first = True
    for txt, regs in loads:
        for k in range(0, len(regs), 2):
            a(f"v_xor_b32 {t0}, {tag}, v{regs[k]}")
            a(f"v_xor_b32 {t1}, {tag}, v{regs[k+1]}")
            if first:
                a(f"v_or_b32 {acc}, {t0}, {t1}"); first = False
            else:
                a(f"v_or3_b32 {acc}, {acc}, {t0}, {t1}")
    a(f"v_and_b32 {acc}, {mask}, {acc}")
    a(f"v_cmp_ne_u32 vcc, 0, {acc}")
    a(f"s_cbranch_vccz {done}")
    a(f"s_sub_u32 {SPINC}, {SPINC}, 1")
    if sleep: a(f"s_sleep {sleep}")
    a(f"s_cmp_lg_u32 {SPINC}, 0")
    a(f"s_cbranch_scc1 {lp}")
    a.label(done)

def row_allreduce(op, regs):
    for sh in (1, 2, 4, 8):
        for r in regs:
            a(f"{op}_dpp {r}, {r}, {r} row_ror:{sh} row_mask:0xf bank_mask:0xf")

def quad_allreduce(op, regs):
    for pm in ("[1,0,3,2]", "[2,3,0,1]"):
        for r in regs:
            a(f"{op}_dpp {r}, {r}, {r} quad_perm:{pm} row_mask:0xf bank_mask:0xf")

def swap16_reduce(op, regs, tmps):
    for r, t in zip(regs, tmps): a(f"v_mov_b32 {t}, {r}")
    for r, t in zip(regs, tmps): a(f"v_permlane16_swap_b32 {r}, {t}")
    for r, t in zip(regs, tmps): a(f"{op} {r}, {r}, {t}")

def swap32_reduce(op, regs, tmps):
    for r, t in zip(regs, tmps): a(f"v_mov_b32 {t}, {r}")
    for r, t in zip(regs, tmps): a(f"v_permlane32_swap_b32 {r}, {t}")
    for r, t in zip(regs, tmps): a(f"{op} {r}, {r}, {t}")

def set_exec(lo, hi):
    a(f"s_mov_b32 exec_lo, 0x{lo:08x}")
    a(f"s_mov_b32 exec_hi, 0x{hi:08x}")
def full_exec(): a("s_mov_b64 exec, -1")

def transpose8(R, T):
    for d in range(4):
        for s, sel in ((0, SELLO), (1, SELHI)):
            c = 2 * d + s
            for p in range(4):
                a(f"v_perm_b32 v{T+4*c+p}, v{R+4*(2*p+1)+d}, v{R+4*(2*p)+d}, {sel}")

KR = [8 * (r & 3) + (r >> 2) for r in range(8)]

def pack_f16_quad(dst, src, tagv):
    a(f"v_cvt_pk_bf16_f32 v{dst+1}, v{src}, v{src+1}")
    a(f"v_cvt_pk_bf16_f32 v{dst+3}, v{src+2}, v{src+3}")
    a(f"v_lshl_or_b32 v{dst}, v{dst+1}, 16, {tagv}")
    a(f"v_lshl_or_b32 v{dst+2}, v{dst+3}, 16, {tagv}")
    a(f"v_and_or_b32 v{dst+1}, v{dst+1}, {MASKHI}, {tagv}")
    a(f"v_and_or_b32 v{dst+3}, v{dst+3}, {MASKHI}, {tagv}")

def pack_f32t_quad(dst, src, tagv):
    a(f"s_mov_b32 {T4}, 0xffffff00")
    for r in range(4):
        a(f"v_and_or_b32 v{dst+r}, v{src+r}, {T4}, {tagv}")

LOG2E = 0x3fb8aa3b
NLOG2E = 0xbfb8aa3b

hdr = open("cdna_kernels/%s.s.ref" % NAME).read().split("\n")
head = [l for l in hdr if l.startswith(";") and "@launch" not in l and "Override launch" not in l and "grid=ceil" not in l]
a.t("\n".join(head))
a.t("; @launch grid=(256,1,1) block=(512,1,1) lds=%d" % LDS_BYTES)
a.t('.amdgcn_target "amdgcn-amd-amdhsa--gfx950"')
a.t(".text")
a.t(".globl " + KN)
a.t(".p2align 8")
a.t(".type %s,@function" % KN)
a.label(KN)

a(f"""
s_cmp_ge_u32 s2, 256
s_cbranch_scc1 L_end
s_load_dwordx16 s[16:31], s[0:1], 0
s_load_dwordx8 s[32:39], s[0:1], 64
s_load_dwordx4 s[40:43], s[0:1], 96
s_load_dwordx2 s[44:45], s[0:1], 112
""")
if STAMPS:
    for k in range(79, 102): a(f"s_mov_b32 s{k}, 0")
stamp(0)
a(f"""
v_and_b32 v1, 63, v0
v_lshrrev_b32 v2, 6, v0
v_readfirstlane_b32 {WAVE}, v2
s_and_b32 {XCD}, s2, 7
s_lshr_b32 {CI}, s2, 3
s_mov_b32 {SELLO}, 0x05040100
s_mov_b32 {SELHI}, 0x07060302
s_mov_b32 {MASKHI}, 0xffff0000
s_waitcnt lgkmcnt(0)
s_load_dword s3, s[44:45], {L.GEN}
""")
mk_srd(SRD_WS, P["ws"], L.WS_SRD)
a(f"""
s_cmp_lt_u32 {CI}, 16
s_cbranch_scc1 L_E
""")

def finish_tags():
    a(f"""
    s_waitcnt lgkmcnt(0)
    s_add_u32 s3, s3, 1
    s_and_b32 {TAG16}, s3, 0xffff
    s_and_b32 {TAG8}, s3, 0xff
    v_mov_b32 v12, {TAG16}
    v_mov_b32 v13, {TAG8}
    """)

a.label("L_F")
a(f"""
s_cmp_lt_u32 {CI}, 20
s_cbranch_scc1 L_FA
s_cmp_lt_u32 {CI}, 28
s_cbranch_scc1 L_FQ
s_sub_u32 {SUB}, {CI}, 28
s_mov_b32 {KIND}, {K_MOD}
s_lshl_b32 {IDX}, {XCD}, 2
s_add_u32 {IDX}, {IDX}, {SUB}
s_add_u32 {IDX}, {IDX}, 48
s_mul_i32 {IDX1}, {XCD}, 7
s_add_u32 {IDX1}, {IDX1}, {SUB}
s_add_u32 {IDX1}, {IDX1}, 4
s_cmp_lt_u32 {SUB}, 3
s_cselect_b32 {KIND1}, {K_U}, {K_DONE}
s_mov_b32 {KIND2}, {K_DONE}
s_mov_b32 {IDX2}, 0
s_branch L_Fconst
L_FA:
s_sub_u32 {SUB}, {CI}, 16
s_mov_b32 {KIND}, {K_MOD}
s_lshl_b32 {IDX}, {XCD}, 2
s_add_u32 {IDX}, {IDX}, {SUB}
s_mov_b32 {KIND1}, {K_MOD}
s_cmp_ge_u32 {XCD}, 4
s_cselect_b32 {IDX1}, 64, 32
s_add_u32 {IDX1}, {IDX1}, {IDX}
s_mov_b32 {KIND2}, {K_U}
s_mul_i32 {IDX2}, {XCD}, 7
s_add_u32 {IDX2}, {IDX2}, {SUB}
s_branch L_Fconst
L_FQ:
s_sub_u32 {SUB}, {CI}, 20
s_mov_b32 {KIND}, {K_Q}
s_lshl_b32 {IDX}, {XCD}, 3
s_add_u32 {IDX}, {IDX}, {SUB}
s_mov_b32 {KIND1}, {K_O}
s_mov_b32 {IDX1}, {IDX}
s_cmp_lt_u32 {SUB}, 4
s_cselect_b32 {KIND2}, {K_FIN}, {K_DONE}
s_mov_b32 {IDX2}, 0
L_Fconst:
""")
a(f"""
v_lshrrev_b32 v16, 3, v1
v_and_b32 v17, 3, v16
v_lshlrev_b32 v17, 1, v17
v_lshrrev_b32 v16, 2, v16
v_lshlrev_b32 v16, 5, v16
v_add_u32 v2, v16, v17
s_lshl_b32 {T0}, {WAVE}, 7
v_add_u32 v2, {T0}, v2
v_and_b32 v3, 7, v1
v_lshlrev_b32 v3, 4, v3
v_lshrrev_b32 v16, 5, v1
v_and_b32 v17, 31, v1
s_lshl_b32 {T0}, {WAVE}, 5
v_add_u32 v17, {T0}, v17
v_lshlrev_b32 v18, 4, v17
v_lshlrev_b32 v19, 12, v16
v_add_u32 v4, v19, v18
v_lshlrev_b32 v19, 14, v16
v_add_u32 v5, v19, v18
v_lshrrev_b32 v18, 3, v17
v_lshlrev_b32 v18, 5, v18
v_and_b32 v19, 7, v17
v_add_u32 v18, v18, v19
v_lshlrev_b32 v18, 1, v18
v_lshlrev_b32 v19, 11, v16
v_add_u32 v6, v18, v19
v_mul_u32_u24 v18, {ACT_B}, v16
v_lshlrev_b32 v19, 3, v17
v_add_u32 v7, v18, v19
v_add_u32 v7, {ACT}, v7
v_and_b32 v16, 1, v1
v_mul_u32_u24 v18, {ACT_B}, v16
v_lshrrev_b32 v19, 4, v1
v_lshlrev_b32 v19, 5, v19
v_add_u32 v18, v18, v19
v_bfe_u32 v19, v1, 1, 1
v_lshlrev_b32 v19, 4, v19
v_add_u32 v18, v18, v19
s_lshl_b32 {T0}, {WAVE}, 8
s_add_u32 {T0}, {T0}, {ACT}
v_add_u32 v8, {T0}, v18
v_and_b32 v16, 1, v1
v_mul_u32_u24 v18, 5120, v16
v_lshrrev_b32 v19, 5, v1
v_mul_u32_u24 v19, 1280, v19
v_add_u32 v18, v18, v19
v_bfe_u32 v19, v1, 4, 1
v_lshlrev_b32 v19, 7, v19
v_add_u32 v18, v18, v19
s_and_b32 {T0}, {WAVE}, 1
s_mul_i32 {T0}, {T0}, 2560
s_lshr_b32 {T1}, {WAVE}, 1
s_mul_i32 {T1}, {T1}, 320
s_add_u32 {T0}, {T0}, {T1}
s_add_u32 {T0}, {T0}, {RED}
v_add_u32 v9, {T0}, v18
v_and_b32 v16, 3, v1
v_mul_u32_u24 v18, 320, v16
v_lshrrev_b32 v19, 2, v1
v_lshlrev_b32 v11, 4, v19
v_add_u32 v18, v18, v11
s_and_b32 {T0}, {WAVE}, 1
s_mul_i32 {T0}, {T0}, 5120
s_add_u32 {T0}, {T0}, {RED}
v_add_u32 v10, {T0}, v18
""")
finish_tags()

a.label("L_JOB")
a(f"""
s_cmp_eq_u32 {KIND}, {K_DONE}
s_cbranch_scc1 L_Fdone
s_cmp_eq_u32 {KIND}, {K_FIN}
s_cbranch_scc1 L_FINAL
s_cmp_eq_u32 {KIND}, {K_MOD}
s_cbranch_scc1 L_set_mod
s_cmp_eq_u32 {KIND}, {K_Q}
s_cbranch_scc1 L_set_q
s_cmp_eq_u32 {KIND}, {K_O}
s_cbranch_scc1 L_set_o
; ---- U
s_mov_b32 {T2}, s{P['w1']}
s_mov_b32 {T3}, s{P['w1']+1}
s_mov_b32 {T4}, {7 << 20}
s_mov_b32 {STRIDE}, 7168
s_lshl_b32 {TILEOFF}, {IDX}, 7
s_lshl_b32 {OUTOFF}, {IDX}, 8
s_add_u32 {OUTOFF}, {OUTOFF}, {L.MB_H}
s_mov_b32 {OUTB}, 16384
s_branch L_set_done
L_set_mod:
s_mov_b32 {T2}, s{P['wm']}
s_mov_b32 {T3}, s{P['wm']+1}
s_mov_b32 {T4}, {12 << 20}
s_mov_b32 {STRIDE}, 12288
s_lshl_b32 {TILEOFF}, {IDX}, 7
s_lshr_b32 {T0}, {IDX}, 4
s_lshl_b32 {T0}, {T0}, 13
s_and_b32 {T1}, {IDX}, 15
s_lshl_b32 {T1}, {T1}, 8
s_add_u32 {OUTOFF}, {T0}, {T1}
s_add_u32 {OUTOFF}, {OUTOFF}, {L.MB_MOD}
s_mov_b32 {OUTB}, 4096
s_branch L_set_done
L_set_q:
s_mov_b32 {T2}, s{P['wq']}
s_mov_b32 {T3}, s{P['wq']+1}
s_mov_b32 {T4}, {8 << 20}
s_mov_b32 {STRIDE}, 8192
s_lshl_b32 {TILEOFF}, {IDX}, 7
s_lshl_b32 {OUTOFF}, {IDX}, 8
s_add_u32 {OUTOFF}, {OUTOFF}, {L.MB_Q}
s_mov_b32 {OUTB}, 16384
s_branch L_set_done
L_set_o:
s_mov_b32 {T2}, s{P['wo']}
s_mov_b32 {T3}, s{P['wo']+1}
s_mov_b32 {T4}, {8 << 20}
s_mov_b32 {STRIDE}, 2048
s_lshr_b32 {T0}, {IDX}, 4
s_and_b32 {T1}, {IDX}, 15
s_lshl_b32 {TILEOFF}, {T0}, 21
s_lshl_b32 {INOFF}, {T1}, 7
s_add_u32 {TILEOFF}, {TILEOFF}, {INOFF}
s_lshl_b32 {INOFF}, {T0}, 12
s_add_u32 {INOFF}, {INOFF}, {L.MB_O}
s_lshl_b32 {OUTOFF}, {T0}, 13
s_lshl_b32 {T1}, {T1}, 8
s_add_u32 {OUTOFF}, {OUTOFF}, {T1}
s_add_u32 {OUTOFF}, {OUTOFF}, {L.MB_X}
s_mov_b32 {OUTB}, 4096
L_set_done:
s_mov_b32 s{SRD_W}, {T2}
s_mov_b32 s{SRD_W+1}, {T3}
s_mov_b32 s{SRD_W+2}, {T4}
s_mov_b32 s{SRD_W+3}, 0x00020000
v_mul_lo_u32 v14, v2, {STRIDE}
v_add_u32 v14, v14, v3
""")
XP = 232
B1R = 236
XF = 20
a(f"""
s_cmp_eq_u32 {KIND}, {K_O}
s_cbranch_scc1 L_early_done
s_cmp_eq_u32 {KIND}, {K_MOD}
s_cbranch_scc0 L_early_x
""")
mk_srd(SRD_A, P["c"], 4096)
for r in range(4): a(f"buffer_load_ushort v{XP+r}, v6, {srd(SRD_A)}, 0 offen offset:{16*r}")
a("s_branch L_early_done")
a.label("L_early_x")
mk_srd(SRD_A, P["x"], 4096)
for r in range(4): a(f"buffer_load_ushort v{XP+r}, v6, {srd(SRD_A)}, 0 offen offset:{16*r}")
a(f"""
s_cmp_eq_u32 {KIND}, {K_Q}
s_cbranch_scc0 L_early_u
v_lshrrev_b32 v16, 5, v1
v_lshlrev_b32 v16, 11, v16
v_and_b32 v17, 31, v1
v_lshlrev_b32 v17, 6, v17
v_add_u32 v16, v16, v17
""")
for r in range(4): a(f"buffer_load_dwordx4 {vq(XF+4*r)}, v16, {srd(SRD_A)}, 0 offen offset:{16*r}")
a("s_branch L_early_done")
a.label("L_early_u")
mk_srd(SRD_B, P["b1"], 7168)
a(f"""
v_lshrrev_b32 v16, 5, v1
v_lshlrev_b32 v16, 5, v16
v_bfe_u32 v17, v1, 2, 3
v_add_u32 v16, v16, v17
v_lshlrev_b32 v16, 1, v16
s_lshl_b32 {T0}, {IDX}, 7
""")
for r in range(4): a(f"buffer_load_ushort v{B1R+r}, v16, {srd(SRD_B)}, {T0} offen offset:{16*r}")
a.label("L_early_done")
R0, T0R, ACC, BOP = 64, 128, 192, 224
for G in range(2):
    for r in range(8):
        a(f"s_mul_i32 {T0}, {STRIDE}, {64*G + KR[r]}")
        a(f"s_add_u32 {T0}, {T0}, {TILEOFF}")
        a(f"buffer_load_dwordx4 {vq(R0 + 32*G + 4*r)}, v14, {srd(SRD_W)}, {T0} offen nt")
stamp_job(0)
a("s_waitcnt vmcnt(16)")
a(f"""
s_cmp_eq_u32 {KIND}, {K_MOD}
s_cbranch_scc1 L_pre_mod
s_cmp_eq_u32 {KIND}, {K_Q}
s_cbranch_scc1 L_pre_q
s_branch L_pre_done
L_pre_mod:
""")
for r in range(4):
    a(f"v_lshlrev_b32 v{XP+r}, 16, v{XP+r}")
for r in range(4):
    a(f"v_mul_f32 v{16+r}, 0x{NLOG2E:08x}, v{XP+r}")
for r in range(4):
    a(f"v_exp_f32 v{16+r}, v{16+r}")
for r in range(4):
    a(f"v_add_f32 v{16+r}, 1.0, v{16+r}")
for r in range(4):
    a(f"v_rcp_f32 v{16+r}, v{16+r}")
for r in range(4):
    a(f"v_mul_f32 v{16+r}, v{XP+r}, v{16+r}")
a(f"""
v_cvt_pk_bf16_f32 v20, v16, v17
v_cvt_pk_bf16_f32 v21, v18, v19
ds_write_b64 v7, v[20:21]
s_branch L_pre_done
L_pre_q:
""")
a("v_mov_b32 v16, 0\nv_mov_b32 v17, 0")
for r in range(16):
    a(f"v_lshlrev_b32 v18, 16, v{XF+r}")
    a(f"v_and_b32 v19, 0xffff0000, v{XF+r}")
    a(f"v_add_f32 v16, v16, v18")
    a(f"v_fmac_f32 v17, v18, v18")
    a(f"v_add_f32 v16, v16, v19")
    a(f"v_fmac_f32 v17, v19, v19")
row_allreduce("v_add_f32", ["v16", "v17"])
swap16_reduce("v_add_f32", ["v16", "v17"], ["v18", "v19"])

def ln_params(s1, s2, m, rden, t0, t1):
    a(f"v_mul_f32 {t0}, 0x3a800000, {s1}")
    a(f"v_mul_f32 {t1}, 0x3a800000, {s2}")
    a(f"v_fma_f32 {t1}, -{t0}, {t0}, {t1}")
    a(f"v_max_f32 {t1}, 0, {t1}")
    bf16r(m, t0)
    bf16r(t1, t1)
    a(f"v_add_f32 {t1}, 0x3727c5ac, {t1}")
    bf16r(t1, t1)
    a(f"v_sqrt_f32 {t1}, {t1}")
    bf16r(t1, t1)
    a(f"v_rcp_f32 {rden}, {t1}")
ln_params("v16", "v17", "v36", "v37", "v38", "v39")
for r in range(4):
    a(f"v_lshlrev_b32 v{XP+r}, 16, v{XP+r}")
    a(f"v_sub_f32 v{XP+r}, v{XP+r}, v36")
bf16r2(f"v{XP}", f"v{XP+1}", f"v{XP}", f"v{XP+1}", "v38")
bf16r2(f"v{XP+2}", f"v{XP+3}", f"v{XP+2}", f"v{XP+3}", "v39")
for r in range(4):
    a(f"v_mul_f32 v{XP+r}, v{XP+r}, v37")
bf16r2(f"v{XP}", f"v{XP+1}", f"v{XP}", f"v{XP+1}", "v38")
bf16r2(f"v{XP+2}", f"v{XP+3}", f"v{XP+2}", f"v{XP+3}", "v39")
a.label("L_pre_done")
a("s_waitcnt vmcnt(8)")
transpose8(R0, T0R)
a("s_waitcnt vmcnt(0)")
transpose8(R0 + 32, T0R + 32)
stamp_job(1)
a(f"""
s_cmp_eq_u32 {KIND}, {K_MOD}
s_cbranch_scc1 L_act_done
s_cmp_eq_u32 {KIND}, {K_O}
s_cbranch_scc1 L_act_o
s_cmp_eq_u32 {KIND}, {K_U}
s_cbranch_scc1 L_act_u
s_mov_b32 {T0}, {L.MB_MOD}
s_mov_b32 {T1}, {L.MB_MOD + 8192}
""")
poll([(f"buffer_load_dwordx4 {vq(20)}, v4, {srd(SRD_WS)}, {T0} offen sc1", [20, 21, 22, 23]),
      (f"buffer_load_dwordx4 {vq(24)}, v4, {srd(SRD_WS)}, {T1} offen sc1", [24, 25, 26, 27])], TAG16, "0xffff")
stamp_job(2)
for r in range(4):
    a(f"v_and_b32 v{20+r}, 0xffff0000, v{20+r}")
    a(f"v_and_b32 v{24+r}, 0xffff0000, v{24+r}")
    a(f"v_add_f32 v{24+r}, 1.0, v{24+r}")
bf16r2("v24", "v25", "v24", "v25", "v28")
bf16r2("v26", "v27", "v26", "v27", "v29")
for r in range(4):
    a(f"v_mul_f32 v{24+r}, v{XP+r}, v{24+r}")
bf16r2("v24", "v25", "v24", "v25", "v28")
bf16r2("v26", "v27", "v26", "v27", "v29")
for r in range(4):
    a(f"v_add_f32 v{24+r}, v{24+r}, v{20+r}")
a(f"""
v_cvt_pk_bf16_f32 v28, v24, v25
v_cvt_pk_bf16_f32 v29, v26, v27
ds_write_b64 v7, v[28:29]
s_branch L_act_done
L_act_o:
""")
poll([(f"buffer_load_dwordx4 {vq(20)}, v5, {srd(SRD_WS)}, {INOFF} offen sc1", [20, 21, 22, 23])], TAG16, "0xffff")
stamp_job(2)
a(f"""
v_perm_b32 v28, v21, v20, {SELHI}
v_perm_b32 v29, v23, v22, {SELHI}
ds_write_b64 v7, v[28:29]
s_branch L_act_done
L_act_u:
s_mov_b32 {T0}, {L.MB_MOD + 2*8192}
s_mov_b32 {T1}, {L.MB_MOD + 4*8192}
s_mov_b32 {T2}, {L.MB_MOD + 3*8192}
""")
GA, WV, SV = 240, 244, 248
poll([(f"buffer_load_dwordx4 {vq(GA)}, v4, {srd(SRD_WS)}, {T0} offen sc1", list(range(GA, GA+4))),
      (f"buffer_load_dwordx4 {vq(WV)}, v4, {srd(SRD_WS)}, {T1} offen sc1", list(range(WV, WV+4))),
      (f"buffer_load_dwordx4 {vq(SV)}, v4, {srd(SRD_WS)}, {T2} offen sc1", list(range(SV, SV+4)))], TAG16, "0xffff")
for r in range(4):
    a(f"v_and_b32 v{GA+r}, 0xffff0000, v{GA+r}")
    a(f"v_and_b32 v{SV+r}, 0xffff0000, v{SV+r}")
    a(f"v_and_b32 v{WV+r}, 0xffff0000, v{WV+r}")
    a(f"v_add_f32 v{WV+r}, 1.0, v{WV+r}")
    a(f"v_lshlrev_b32 v{XP+r}, 16, v{XP+r}")
bf16r2(f"v{WV}", f"v{WV+1}", f"v{WV}", f"v{WV+1}", "v28")
bf16r2(f"v{WV+2}", f"v{WV+3}", f"v{WV+2}", f"v{WV+3}", "v29")
a(f"""
s_mov_b32 {T0}, {L.MB_X}
s_mov_b32 {T1}, {L.MB_X + 8192}
s_mov_b32 {T2}, {L.MB_X + 2*8192}
s_mov_b32 {T3}, {L.MB_X + 3*8192}
""")
poll([(f"buffer_load_dwordx4 {vq(20+4*g)}, v4, {srd(SRD_WS)}, {[T0,T1,T2,T3][g]} offen sc1", list(range(20+4*g, 24+4*g))) for g in range(4)], TAG8, "0xff")
stamp_job(2)
for r in range(4):
    a(f"v_add_f32 v{20+r}, v{20+r}, v{24+r}")
    a(f"v_add_f32 v{28+r}, v{28+r}, v{32+r}")
for r in range(4):
    a(f"v_add_f32 v{20+r}, v{20+r}, v{28+r}")
bf16r2("v20", "v21", "v20", "v21", "v28")
bf16r2("v22", "v23", "v22", "v23", "v29")
for r in range(4):
    a(f"v_mul_f32 v{20+r}, v{GA+r}, v{20+r}")
bf16r2("v20", "v21", "v20", "v21", "v28")
bf16r2("v22", "v23", "v22", "v23", "v29")
for r in range(4):
    a(f"v_add_f32 v{20+r}, v{XP+r}, v{20+r}")
bf16r2("v20", "v21", "v20", "v21", "v28")
bf16r2("v22", "v23", "v22", "v23", "v29")

def block_stats(rnd):
    a("v_add_f32 v16, v20, v21")
    a("v_mul_f32 v17, v20, v20")
    a("v_add_f32 v18, v22, v23")
    a("v_fmac_f32 v17, v21, v21")
    a("v_add_f32 v16, v16, v18")
    a("v_fmac_f32 v17, v22, v22")
    a("v_fmac_f32 v17, v23, v23")
    row_allreduce("v_add_f32", ["v16", "v17"])
    swap16_reduce("v_add_f32", ["v16", "v17"], ["v18", "v19"])
    a(f"v_lshrrev_b32 v18, 5, v1")
    a(f"v_lshlrev_b32 v18, 6, v18")
    a(f"s_lshl_b32 {T0}, {WAVE}, 3")
    a(f"s_add_u32 {T0}, {T0}, {ST + rnd*128}")
    a(f"v_add_u32 v19, {T0}, v18")
    a("ds_write_b64 v19, v[16:17]")
    a("s_waitcnt lgkmcnt(0)")
    a("s_barrier")
    a(f"v_add_u32 v19, {ST + rnd*128}, v18")
    for k in range(4): a(f"ds_read_b128 {vq(32+4*k)}, v19 offset:{16*k}")
    a("s_waitcnt lgkmcnt(0)")
    a("v_add_f32 v16, v32, v34\nv_add_f32 v17, v33, v35")
    for k in range(1, 4):
        a(f"v_add_f32 v16, v16, v{32+4*k}\nv_add_f32 v17, v17, v{33+4*k}")
        a(f"v_add_f32 v16, v16, v{34+4*k}\nv_add_f32 v17, v17, v{35+4*k}")
block_stats(0)
ln_params("v16", "v17", "v36", "v37", "v38", "v39")
for r in range(4):
    a(f"v_sub_f32 v{20+r}, v{20+r}, v36")
bf16r2("v20", "v21", "v20", "v21", "v28")
bf16r2("v22", "v23", "v22", "v23", "v29")
for r in range(4):
    a(f"v_mul_f32 v{20+r}, v{20+r}, v37")
bf16r2("v20", "v21", "v20", "v21", "v28")
bf16r2("v22", "v23", "v22", "v23", "v29")
for r in range(4):
    a(f"v_mul_f32 v{20+r}, v{20+r}, v{WV+r}")
bf16r2("v20", "v21", "v20", "v21", "v28")
bf16r2("v22", "v23", "v22", "v23", "v29")
for r in range(4):
    a(f"v_add_f32 v{20+r}, v{20+r}, v{SV+r}")
bf16r2("v20", "v21", "v20", "v21", "v28")
bf16r2("v22", "v23", "v22", "v23", "v29")
block_stats(1)
ln_params("v16", "v17", "v36", "v37", "v38", "v39")
for r in range(4):
    a(f"v_sub_f32 v{20+r}, v{20+r}, v36")
bf16r2("v20", "v21", "v20", "v21", "v28")
bf16r2("v22", "v23", "v22", "v23", "v29")
for r in range(4):
    a(f"v_mul_f32 v{20+r}, v{20+r}, v37")
a(f"""
v_cvt_pk_bf16_f32 v28, v20, v21
v_cvt_pk_bf16_f32 v29, v22, v23
ds_write_b64 v7, v[28:29]
""")
a.label("L_act_done")
a("s_waitcnt lgkmcnt(0)")
a(f"ds_read_b128 {vq(BOP)}, v8")
a(f"ds_read_b128 {vq(BOP+4)}, v8 offset:128")
a("s_waitcnt lgkmcnt(1)")
for c in range(8):
    a(f"v_mfma_f32_16x16x32_bf16 {vq(ACC+4*c)}, {vq(T0R+4*c)}, {vq(BOP)}, 0")
a("s_waitcnt lgkmcnt(0)")
for c in range(8):
    a(f"v_mfma_f32_16x16x32_bf16 {vq(ACC+4*c)}, {vq(T0R+32+4*c)}, {vq(BOP+4)}, {vq(ACC+4*c)}")
set_exec(0x00030003, 0x000C000C)
for c in range(8):
    a(f"ds_write_b128 v9, {vq(ACC+4*c)} offset:{16*c}")
full_exec()
a("s_waitcnt lgkmcnt(0)")
a("s_barrier")
a(f"""
s_cmp_ge_u32 {WAVE}, 2
s_cbranch_scc1 L_epi_done
""")
for k in range(4): a(f"ds_read_b128 {vq(20+4*k)}, v10 offset:{1280*k}")
a("s_waitcnt lgkmcnt(0)")
for r in range(4):
    a(f"v_add_f32 v{20+r}, v{20+r}, v{24+r}")
    a(f"v_add_f32 v{28+r}, v{28+r}, v{32+r}")
for r in range(4):
    a(f"v_add_f32 v{20+r}, v{20+r}, v{28+r}")
quad_allreduce("v_add_f32", ["v20", "v21", "v22", "v23"])
a(f"""
s_mul_i32 {T0}, {WAVE}, {OUTB}
s_add_u32 {T0}, {T0}, {OUTOFF}
s_cmp_eq_u32 {KIND}, {K_O}
s_cbranch_scc1 L_epi_o
s_cmp_eq_u32 {KIND}, {K_U}
s_cbranch_scc0 L_epi_f16
""")
bf16r2("v20", "v21", "v20", "v21", "v28")
bf16r2("v22", "v23", "v22", "v23", "v29")
for r in range(4):
    a(f"v_lshlrev_b32 v{24+r}, 16, v{B1R+r}")
    a(f"v_add_f32 v{20+r}, v{20+r}, v{24+r}")
bf16r2("v20", "v21", "v20", "v21", "v28")
bf16r2("v22", "v23", "v22", "v23", "v29")
import struct, math
def f2u(f): return struct.unpack("<I", struct.pack("<f", f))[0]
KG = f2u(-2.0 * math.sqrt(2.0 / math.pi) * math.log2(math.e))
for r in range(4):
    a(f"v_mul_f32 v{24+r}, v{20+r}, v{20+r}")
for r in range(4):
    a(f"v_mov_b32 v{28+r}, 1.0")
    a(f"v_fmac_f32 v{28+r}, 0x{f2u(0.044715):08x}, v{24+r}")
for r in range(4):
    a(f"v_mul_f32 v{24+r}, v{20+r}, v{28+r}")
    a(f"v_mul_f32 v{24+r}, 0x{KG:08x}, v{24+r}")
for r in range(4): a(f"v_exp_f32 v{24+r}, v{24+r}")
for r in range(4): a(f"v_add_f32 v{24+r}, 1.0, v{24+r}")
for r in range(4): a(f"v_rcp_f32 v{24+r}, v{24+r}")
for r in range(4): a(f"v_mul_f32 v{20+r}, v{20+r}, v{24+r}")
a.label("L_epi_f16")
pack_f16_quad(24, 20, "v12")
a("s_branch L_epi_store")
a.label("L_epi_o")
pack_f32t_quad(24, 20, "v13")
a.label("L_epi_store")
set_exec(0x11111111, 0x11111111)
a(f"buffer_store_dwordx4 {vq(24)}, v11, {srd(SRD_WS)}, {T0} offen sc1")
full_exec()
a.label("L_epi_done")
stamp_job(3)
if STAMPS: a(f"s_add_u32 {JOBN}, {JOBN}, 1")
a(f"""
s_barrier
s_mov_b32 {KIND}, {KIND1}
s_mov_b32 {IDX}, {IDX1}
s_mov_b32 {KIND1}, {KIND2}
s_mov_b32 {IDX1}, {IDX2}
s_mov_b32 {KIND2}, {K_DONE}
s_branch L_JOB
""")

a.label("L_FINAL")
a(f"""
s_cmp_lg_u32 {WAVE}, 0
s_cbranch_scc1 L_Fdone
s_lshl_b32 {T0}, {XCD}, 2
s_add_u32 {T0}, {T0}, {SUB}
v_lshrrev_b32 v16, 5, v1
v_bfe_u32 v17, v1, 2, 3
v_and_b32 v18, 3, v1
v_lshlrev_b32 v19, 12, v16
v_lshlrev_b32 v20, 4, v17
v_add_u32 v19, v19, v20
v_lshlrev_b32 v21, 13, v18
v_add_u32 v21, v21, v19
v_lshlrev_b32 v22, 11, v16
v_lshlrev_b32 v23, 1, v17
v_add_u32 v22, v22, v23
; v23 = c'*2 (b2 offset)
v_lshlrev_b32 v24, 10, v18
v_lshlrev_b32 v25, 9, v16
v_add_u32 v24, v24, v25
v_add_u32 v24, v24, v20
s_lshl_b32 {T1}, {T0}, 6
""")
mk_srd(SRD_A, P["x"], 4096)
mk_srd(SRD_B, P["b2"], 2048)
mk_srd(SRD_W, P["out"], 4096)
for r in range(4): a(f"buffer_load_ushort v{40+r}, v22, {srd(SRD_A)}, {T1} offen offset:{16*r}")
for r in range(4): a(f"buffer_load_ushort v{44+r}, v23, {srd(SRD_B)}, {T1} offen offset:{16*r}")
a(f"buffer_load_ushort v48, v22, {srd(SRD_W)}, {T1} offen")
a(f"""
s_lshl_b32 {T2}, {T0}, 7
s_add_u32 {T3}, {T2}, {L.MB_MOD + 2*8192}
s_add_u32 {T4}, {T2}, {L.MB_MOD + 5*8192}
s_add_u32 {T2}, {T2}, {L.MB_X}
""")
poll([(f"buffer_load_dwordx4 {vq(52)}, v19, {srd(SRD_WS)}, {T3} offen sc1", [52, 53, 54, 55]),
      (f"buffer_load_dwordx4 {vq(56)}, v19, {srd(SRD_WS)}, {T4} offen sc1", [56, 57, 58, 59])], TAG16, "0xffff", acc="v26", t0="v27", t1="v28")
poll([(f"buffer_load_dwordx4 {vq(60)}, v21, {srd(SRD_WS)}, {T2} offen sc1", [60, 61, 62, 63])], TAG8, "0xff", acc="v26", t0="v27", t1="v28")
quad_allreduce("v_add_f32", ["v60", "v61", "v62", "v63"])
bf16r2("v60", "v61", "v60", "v61", "v28")
bf16r2("v62", "v63", "v62", "v63", "v29")
for r in range(4):
    a(f"v_and_b32 v{52+r}, 0xffff0000, v{52+r}")
    a(f"v_and_b32 v{56+r}, 0xffff0000, v{56+r}")
    a(f"v_lshlrev_b32 v{40+r}, 16, v{40+r}")
    a(f"v_lshlrev_b32 v{44+r}, 16, v{44+r}")
    a(f"v_mul_f32 v{60+r}, v{52+r}, v{60+r}")
bf16r2("v60", "v61", "v60", "v61", "v28")
bf16r2("v62", "v63", "v62", "v63", "v29")
for r in range(4): a(f"v_add_f32 v{60+r}, v{40+r}, v{60+r}")
bf16r2("v60", "v61", "v60", "v61", "v28")
bf16r2("v62", "v63", "v62", "v63", "v29")
a(f"""
s_lshl_b32 {T2}, {XCD}, 14
s_lshl_b32 {T3}, {SUB}, 7
s_add_u32 {T2}, {T2}, {T3}
s_add_u32 {T2}, {T2}, {L.MB_D}
s_add_u32 {T3}, {T2}, 4096
s_add_u32 {T4}, {T2}, 8192
s_add_u32 {T0}, {T2}, 12288
""")
stamp(9)
poll([(f"buffer_load_dwordx4 {vq(64+4*k)}, v24, {srd(SRD_WS)}, {[T2,T3,T4,T0][k]} offen sc1", list(range(64+4*k, 68+4*k))) for k in range(4)], TAG8, "0xff", acc="v26", t0="v27", t1="v28")
stamp(10)
for r in range(4):
    a(f"v_add_f32 v{64+r}, v{64+r}, v{68+r}")
    a(f"v_add_f32 v{72+r}, v{72+r}, v{76+r}")
for r in range(4): a(f"v_add_f32 v{64+r}, v{64+r}, v{72+r}")
quad_allreduce("v_add_f32", ["v64", "v65", "v66", "v67"])
bf16r2("v64", "v65", "v64", "v65", "v28")
bf16r2("v66", "v67", "v66", "v67", "v29")
for r in range(4): a(f"v_add_f32 v{64+r}, v{64+r}, v{44+r}")
bf16r2("v64", "v65", "v64", "v65", "v28")
bf16r2("v66", "v67", "v66", "v67", "v29")
for r in range(4): a(f"v_mul_f32 v{64+r}, v{56+r}, v{64+r}")
bf16r2("v64", "v65", "v64", "v65", "v28")
bf16r2("v66", "v67", "v66", "v67", "v29")
for r in range(4): a(f"v_add_f32 v{64+r}, v{60+r}, v{64+r}")
for r in range(4): a(f"v_cvt_pk_bf16_f32 v{64+r}, v{64+r}, v{64+r}")
set_exec(0x11111111, 0x11111111)
for r in range(4): a(f"buffer_store_short v{64+r}, v22, {srd(SRD_W)}, {T1} offen offset:{16*r}")
full_exec()
a(f"""
s_cmp_lg_u32 s2, {20*8}
s_cbranch_scc1 L_Fdone
v_mov_b32 v26, s3
v_mov_b32 v27, 0
s_mov_b32 exec_lo, 1
s_mov_b32 exec_hi, 0
buffer_store_dword v26, v27, {srd(SRD_WS)}, 0 offen sc1
s_mov_b64 exec, -1
""")
a.label("L_Fdone")
stamp(13)
a("s_branch L_fin")

a.label("L_E")
KR0, VR0, VT0 = 64, 96, 128
a(f"""
s_and_b32 {EB}, {XCD}, 1
s_lshr_b32 {EG}, {XCD}, 1
; kvbase = ((b*4+g)*32768 + 28672 + 256c) * 256
s_lshl_b32 {T0}, {EB}, 2
s_add_u32 {T0}, {T0}, {EG}
s_lshl_b32 {T0}, {T0}, 23
s_lshl_b32 {T1}, {CI}, 16
s_add_u32 {T0}, {T0}, {T1}
s_add_u32 {KVB}, {T0}, {28672*256}
s_add_u32 {T1}, {KVB}, 4096
""")
mk_srd(SRD_W, P["k"], 64 << 20)
mk_srd(SRD_A, P["v"], 64 << 20)
a(f"""
; voffK = (32w + j16)*256 + g4*16
v_and_b32 v16, 15, v1
v_lshrrev_b32 v17, 4, v1
s_lshl_b32 {T0}, {WAVE}, 5
v_add_u32 v18, {T0}, v16
v_lshlrev_b32 v18, 8, v18
v_lshlrev_b32 v19, 4, v17
v_add_u32 v2, v18, v19
; voffV = (32w + 4 g4)*256 + 16 j16
v_lshlrev_b32 v18, 2, v17
v_add_u32 v18, {T0}, v18
v_lshlrev_b32 v18, 8, v18
v_lshlrev_b32 v19, 4, v16
v_add_u32 v3, v18, v19
""")
for u in range(2):
    for t in range(4):
        a(f"buffer_load_dwordx4 {vq(KR0 + 16*u + 4*t)}, v2, {srd(SRD_W)}, {[KVB, T1][u]} offen offset:{64*t} nt")
for e in range(8):
    a(f"buffer_load_dwordx4 {vq(VR0 + 4*e)}, v3, {srd(SRD_A)}, {[KVB, T1][e >> 2]} offen offset:{256*(e & 3)} nt")
stamp(1)
finish_tags()
a(f"""
v_and_b32 v18, 31, v1
v_lshlrev_b32 v4, 4, v18
s_lshl_b32 {T0}, {EB}, 14
s_lshl_b32 {T1}, {EG}, 12
s_add_u32 {T0}, {T0}, {T1}
s_lshl_b32 {T1}, {WAVE}, 9
s_add_u32 {T0}, {T0}, {T1}
s_add_u32 {INOFF}, {T0}, {L.MB_Q}
v_lshrrev_b32 v19, 3, v18
v_lshlrev_b32 v19, 6, v19
v_and_b32 v20, 7, v1
v_lshlrev_b32 v20, 1, v20
v_add_u32 v19, v19, v20
s_mul_i32 {T0}, {WAVE}, {QL_H}
s_add_u32 {T0}, {T0}, {QL}
v_add_u32 v5, {T0}, v19
v_and_b32 v19, 7, v1
v_mul_u32_u24 v19, {QL_H}, v19
v_lshlrev_b32 v20, 4, v17
v_add_u32 v6, v19, v20
v_add_u32 v6, {QL}, v6
v_and_b32 v19, 7, v1
v_lshlrev_b32 v7, 5, v19
v_lshlrev_b32 v20, 9, v19
v_lshlrev_b32 v21, 7, v17
v_add_u32 v20, v20, v21
v_lshlrev_b32 v21, 4, v19
v_add_u32 v20, v20, v21
s_mul_i32 {T0}, {WAVE}, {ORED_W}
s_add_u32 {T0}, {T0}, {ORED}
v_add_u32 v8, {T0}, v20
v_and_b32 v19, 1, v1
v_mul_u32_u24 v19, {ORED_W}, v19
v_lshlrev_b32 v20, 7, v17
v_add_u32 v19, v19, v20
v_bfe_u32 v20, v1, 1, 3
v_xor_b32 v20, {WAVE}, v20
v_lshlrev_b32 v20, 4, v20
v_add_u32 v19, v19, v20
s_lshl_b32 {T0}, {WAVE}, 9
s_add_u32 {T0}, {T0}, {ORED}
v_add_u32 v9, {T0}, v19
v_lshrrev_b32 v19, 1, v1
v_lshlrev_b32 v19, 4, v19
s_lshl_b32 {T0}, {WAVE}, 9
v_add_u32 v10, {T0}, v19
""")
a("s_waitcnt vmcnt(0)")
transpose8(VR0, VT0)
stamp(2)
poll([(f"buffer_load_dwordx4 {vq(20)}, v4, {srd(SRD_WS)}, {INOFF} offen sc1", [20, 21, 22, 23])], TAG16, "0xffff")
stamp(3)
for r in range(4): a(f"ds_write_b16_d16_hi v5, v{20+r} offset:{16*r}")
a("s_waitcnt lgkmcnt(0)")
a("s_barrier")
QOP = 24
for t in range(4): a(f"ds_read_b128 {vq(QOP+4*t)}, v6 offset:{64*t}")
a("s_waitcnt lgkmcnt(0)")
S0 = 40
for u in range(2):
    for t in range(4):
        a(f"v_mfma_f32_16x16x32_bf16 {vq(S0+4*u)}, {vq(KR0+16*u+4*t)}, {vq(QOP+4*t)}, {'0' if t == 0 else vq(S0+4*u)}")
SCALE = f2u(128 ** -0.5)
for k in range(0, 8, 2): bf16r2(f"v{S0+k}", f"v{S0+k+1}", f"v{S0+k}", f"v{S0+k+1}", f"v{48+k//2}")
for k in range(8): a(f"v_mul_f32 v{S0+k}, 0x{SCALE:08x}, v{S0+k}")
for k in range(0, 8, 2): bf16r2(f"v{S0+k}", f"v{S0+k+1}", f"v{S0+k}", f"v{S0+k+1}", f"v{48+k//2}")
a(f"""
v_max3_f32 v16, v{S0}, v{S0+1}, v{S0+2}
v_max3_f32 v17, v{S0+3}, v{S0+4}, v{S0+5}
v_max3_f32 v16, v16, v{S0+6}, v{S0+7}
v_max_f32 v16, v16, v17
""")
swap16_reduce("v_max_f32", ["v16"], ["v17"])
swap32_reduce("v_max_f32", ["v16"], ["v17"])
a(f"""
s_lshl_b32 {T0}, {WAVE}, 2
s_add_u32 {T0}, {T0}, {MX}
v_add_u32 v18, {T0}, v7
ds_write_b32 v18, v16
s_waitcnt lgkmcnt(0)
s_barrier
v_add_u32 v18, {MX}, v7
ds_read_b128 v[48:51], v18
ds_read_b128 v[52:55], v18 offset:16
s_waitcnt lgkmcnt(0)
v_max3_f32 v16, v48, v49, v50
v_max3_f32 v17, v51, v52, v53
v_max3_f32 v16, v16, v54, v55
v_max_f32 v16, v16, v17
v_mul_f32 v17, 0x{NLOG2E:08x}, v16
s_mov_b32 {T1}, 0x{LOG2E:08x}
""")
for k in range(8): a(f"v_fma_f32 v{S0+k}, v{S0+k}, {T1}, v17")
for k in range(8): a(f"v_exp_f32 v{S0+k}, v{S0+k}")
POP = 56
for k in range(4): a(f"v_cvt_pk_bf16_f32 v{POP+k}, v{S0+2*k}, v{S0+2*k+1}")
OACC = 192
for c in range(8):
    a(f"v_mfma_f32_16x16x32_bf16 {vq(OACC+4*c)}, {vq(VT0+4*c)}, {vq(POP)}, 0")
a(f"""
v_add_f32 v18, v{S0}, v{S0+1}
v_add_f32 v19, v{S0+2}, v{S0+3}
v_add_f32 v20, v{S0+4}, v{S0+5}
v_add_f32 v21, v{S0+6}, v{S0+7}
v_add_f32 v18, v18, v19
v_add_f32 v20, v20, v21
v_add_f32 v18, v18, v20
""")
swap16_reduce("v_add_f32", ["v18"], ["v19"])
swap32_reduce("v_add_f32", ["v18"], ["v19"])
a(f"""
s_lshl_b32 {T0}, {WAVE}, 2
s_add_u32 {T0}, {T0}, {LS}
v_add_u32 v19, {T0}, v7
ds_write_b32 v19, v18
""")
set_exec(0x00FF00FF, 0x00FF00FF)
for c in range(8):
    a(f"v_xor_b32 v19, {c<<4}, v8")
    a(f"ds_write_b128 v19, {vq(OACC+4*c)}")
full_exec()
a("s_waitcnt lgkmcnt(0)")
a("s_barrier")
stamp(4)
for k in range(4): a(f"ds_read_b128 {vq(20+4*k)}, v9 offset:{2*k*ORED_W}")
a(f"v_add_u32 v18, {LS}, v7")
a("ds_read_b128 v[48:51], v18")
a("ds_read_b128 v[52:55], v18 offset:16")
a("s_waitcnt lgkmcnt(2)")
for r in range(4):
    a(f"v_add_f32 v{20+r}, v{20+r}, v{24+r}")
    a(f"v_add_f32 v{28+r}, v{28+r}, v{32+r}")
for r in range(4): a(f"v_add_f32 v{20+r}, v{20+r}, v{28+r}")
for r in range(4): a(f"v_add_f32_dpp v{20+r}, v{20+r}, v{20+r} quad_perm:[1,0,3,2] row_mask:0xf bank_mask:0xf")
pack_f32t_quad(24, 20, "v13")
a(f"""
s_lshl_b32 {T0}, {XCD}, 16
s_lshl_b32 {T1}, {CI}, 12
s_add_u32 {T0}, {T0}, {T1}
s_add_u32 {T0}, {T0}, {L.MB_P}
""")
set_exec(0x55555555, 0x55555555)
a(f"buffer_store_dwordx4 {vq(24)}, v10, {srd(SRD_WS)}, {T0} offen sc1")
full_exec()
a(f"""
s_cmp_lg_u32 {WAVE}, 0
s_cbranch_scc1 L_E_nostat
s_waitcnt lgkmcnt(0)
v_add_f32 v48, v48, v49
v_add_f32 v50, v50, v51
v_add_f32 v52, v52, v53
v_add_f32 v54, v54, v55
v_add_f32 v48, v48, v50
v_add_f32 v52, v52, v54
v_add_f32 v49, v48, v52
s_mov_b32 {T4}, 0xffffff00
v_and_or_b32 v48, v16, {T4}, v13
v_and_or_b32 v49, v49, {T4}, v13
v_lshlrev_b32 v50, 3, v1
s_lshl_b32 {T0}, {XCD}, 4
s_add_u32 {T0}, {T0}, {CI}
s_lshl_b32 {T0}, {T0}, 7
s_add_u32 {T0}, {T0}, {L.MB_PS}
s_mov_b32 exec_lo, 0xff
s_mov_b32 exec_hi, 0
buffer_store_dwordx2 v[48:49], v50, {srd(SRD_WS)}, {T0} offen sc1
s_mov_b64 exec, -1
""")
stamp(5)
a(f"""
v_and_b32 v16, 3, v1
v_bfe_u32 v17, v1, 2, 3
v_lshrrev_b32 v18, 5, v1
v_lshlrev_b32 v19, 12, v16
v_lshlrev_b32 v20, 7, v18
v_add_u32 v19, v19, v20
v_lshlrev_b32 v20, 4, v17
v_add_u32 v19, v19, v20
; v21 = sl*128
v_lshlrev_b32 v21, 7, v16
; v22 = Q*16 = (8 qlo + c')*16
v_lshlrev_b32 v22, 7, v18
v_add_u32 v22, v22, v20
s_lshr_b32 {T2}, {CI}, 1
s_and_b32 {T3}, {CI}, 1
s_lshl_b32 {T0}, {XCD}, 16
s_lshl_b32 {T1}, {T2}, 9
s_add_u32 {T0}, {T0}, {T1}
s_lshl_b32 {T1}, {T3}, 8
s_add_u32 {T0}, {T0}, {T1}
s_add_u32 {INOFF}, {T0}, {L.MB_P}
s_lshl_b32 {T0}, {XCD}, 11
s_lshl_b32 {T1}, {T2}, 3
s_add_u32 {T0}, {T0}, {T1}
s_add_u32 {OUTOFF}, {T0}, {L.MB_PS}
s_lshl_b32 {T0}, {EB}, 14
s_lshl_b32 {T1}, {EG}, 12
s_add_u32 {T0}, {T0}, {T1}
s_lshl_b32 {T1}, {T2}, 9
s_add_u32 {T0}, {T0}, {T1}
s_lshl_b32 {T1}, {T3}, 8
s_add_u32 {T0}, {T0}, {T1}
s_add_u32 {OUTB}, {T0}, {L.MB_O}
s_add_u32 {T0}, {INOFF}, 16384
s_add_u32 {T1}, {INOFF}, 32768
s_add_u32 {T2}, {INOFF}, 49152
""")
lds = []
for k in range(4):
    lds.append((f"buffer_load_dwordx4 {vq(24+4*k)}, v19, {srd(SRD_WS)}, {[INOFF,T0,T1,T2][k]} offen sc1", list(range(24+4*k, 28+4*k))))
for k in range(4):
    lds.append((f"buffer_load_dwordx2 {v2(40+2*k)}, v21, {srd(SRD_WS)}, {OUTOFF} offen offset:{512*k} sc1", [40+2*k, 41+2*k]))
poll(lds, TAG8, "0xff", acc="v48", t0="v49", t1="v50")
stamp(6)
for k in range(4): a(f"v_and_b32 v{40+2*k}, 0xffffff00, v{40+2*k}")
a(f"""
v_max3_f32 v48, v40, v42, v44
v_max_f32 v48, v48, v46
""")
quad_allreduce("v_max_f32", ["v48"])
for k in range(4): a(f"v_sub_f32 v{50+k}, v{40+2*k}, v48")
for k in range(4): a(f"v_mul_f32 v{50+k}, 0x{LOG2E:08x}, v{50+k}")
for k in range(4): a(f"v_exp_f32 v{50+k}, v{50+k}")
a("v_mul_f32 v54, v50, v41")
for k in range(1, 4): a(f"v_fmac_f32 v54, v{50+k}, v{41+2*k}")
for r in range(4): a(f"v_mul_f32 v{56+r}, v50, v{24+r}")
for k in range(1, 4):
    for r in range(4): a(f"v_fmac_f32 v{56+r}, v{50+k}, v{24+4*k+r}")
quad_allreduce("v_add_f32", ["v54", "v56", "v57", "v58", "v59"])
a("v_rcp_f32 v54, v54")
for r in range(4): a(f"v_mul_f32 v{56+r}, v{56+r}, v54")
pack_f16_quad(60, 56, "v12")
set_exec(0x11111111, 0x11111111)
a(f"buffer_store_dwordx4 {vq(60)}, v22, {srd(SRD_WS)}, {OUTB} offen sc1")
full_exec()
stamp(7)
a.label("L_E_nostat")
a("s_barrier")
a(f"""
s_cmp_ge_u32 {WAVE}, 7
s_cbranch_scc1 L_E_dskip
""")
mk_srd(SRD_W, P["w2"], 7 << 20)
a(f"""
v_lshrrev_b32 v17, 4, v1
v_lshlrev_b32 v18, 12, v17
v_and_b32 v16, 15, v1
v_lshlrev_b32 v19, 4, v16
v_add_u32 v2, v18, v19
s_mul_i32 {T0}, {CI}, 224
s_lshl_b32 {T1}, {WAVE}, 5
s_add_u32 {T0}, {T0}, {T1}
s_lshl_b32 {INOFF}, {T0}, 2
s_add_u32 {INOFF}, {INOFF}, {L.MB_H}
v_and_b32 v18, 1, v1
v_lshlrev_b32 v18, 14, v18
v_lshlrev_b32 v19, 5, v17
v_add_u32 v3, v18, v19
s_lshl_b32 {T0}, {T0}, 11
s_lshl_b32 {T1}, {XCD}, 8
s_add_u32 {TILEOFF}, {T0}, {T1}
""")
for e in range(8):
    a(f"s_add_u32 {T0}, {TILEOFF}, {KR[e]*2048}")
    a(f"buffer_load_dwordx4 {vq(64+4*e)}, v2, {srd(SRD_W)}, {T0} offen nt")
a(f"""
v_and_b32 v18, 1, v1
v_lshlrev_b32 v18, 9, v18
v_lshlrev_b32 v19, 7, v17
v_add_u32 v18, v18, v19
s_lshl_b32 {T0}, {WAVE}, 10
s_add_u32 {T0}, {T0}, {DRED}
v_add_u32 v4, {T0}, v18
s_waitcnt vmcnt(0)
""")
transpose8(64, 128)
stamp(8)
poll([(f"buffer_load_dwordx4 {vq(20)}, v3, {srd(SRD_WS)}, {INOFF} offen sc1", [20, 21, 22, 23]),
      (f"buffer_load_dwordx4 {vq(24)}, v3, {srd(SRD_WS)}, {INOFF} offen offset:16 sc1", [24, 25, 26, 27])], TAG16, "0xffff")
stamp(9)
a(f"""
v_perm_b32 v28, v21, v20, {SELHI}
v_perm_b32 v29, v23, v22, {SELHI}
v_perm_b32 v30, v25, v24, {SELHI}
v_perm_b32 v31, v27, v26, {SELHI}
""")
for c in range(8):
    a(f"v_mfma_f32_16x16x32_bf16 {vq(192+4*c)}, {vq(128+4*c)}, {vq(28)}, 0")
set_exec(0x00030003, 0x00030003)
for c in range(8): a(f"ds_write_b128 v4, {vq(192+4*c)} offset:{16*c}")
full_exec()
a("s_waitcnt lgkmcnt(0)")
a.label("L_E_dskip")
a("s_barrier")
a(f"""
s_cmp_lg_u32 {WAVE}, 0
s_cbranch_scc1 L_E_done
v_lshlrev_b32 v16, 4, v1
v_add_u32 v17, {DRED}, v16
""")
for w in range(7): a(f"ds_read_b128 {vq(20+4*w)}, v17 offset:{1024*w}")
a("s_waitcnt lgkmcnt(0)")
for r in range(4):
    a(f"v_add_f32 v{20+r}, v{20+r}, v{24+r}")
    a(f"v_add_f32 v{28+r}, v{28+r}, v{32+r}")
    a(f"v_add_f32 v{36+r}, v{36+r}, v{40+r}")
for r in range(4):
    a(f"v_add_f32 v{20+r}, v{20+r}, v{28+r}")
    a(f"v_add_f32 v{36+r}, v{36+r}, v{44+r}")
for r in range(4): a(f"v_add_f32 v{20+r}, v{20+r}, v{36+r}")
pack_f32t_quad(24, 20, "v13")
a(f"""
s_lshl_b32 {T0}, {XCD}, 14
s_lshl_b32 {T1}, {CI}, 10
s_add_u32 {T0}, {T0}, {T1}
s_add_u32 {T0}, {T0}, {L.MB_D}
buffer_store_dwordx4 {vq(24)}, v16, {srd(SRD_WS)}, {T0} offen sc1
""")
stamp(10)
a.label("L_E_done")

a.label("L_fin")
if STAMPS:
    a(f"""
    s_cmp_lg_u32 {WAVE}, 0
    s_cbranch_scc1 L_end
    s_waitcnt lgkmcnt(0)
    s_lshl_b32 {T0}, s2, 6
    s_add_u32 {T0}, {T0}, {L.STAMPS}
    v_mov_b32 v17, 0
    s_mov_b32 exec_lo, 1
    s_mov_b32 exec_hi, 0
    """)
    for k in range(16):
        a(f"v_mov_b32 v16, s{80+k}")
        a(f"buffer_store_dword v16, v17, {srd(SRD_WS)}, {T0} offen offset:{4*k}")
a.label("L_end")
a("s_endpgm")
a.t(f""".section .rodata,"a"
.p2align 6
.amdhsa_kernel {KN}
  .amdhsa_next_free_vgpr 256
  .amdhsa_next_free_sgpr 102
  .amdhsa_accum_offset 256
  .amdhsa_group_segment_fixed_size 0
  .amdhsa_kernarg_size 120
  .amdhsa_user_sgpr_count 2
  .amdhsa_user_sgpr_kernarg_segment_ptr 1
  .amdhsa_system_sgpr_workgroup_id_x 1
.end_amdhsa_kernel""")
out = sys.argv[1] if len(sys.argv) > 1 else "cdna_kernels/%s.s" % NAME
open(out, "w").write(a.render())
print("wrote", out)
```
